```python
import torch

def _softmax(x, axis=-1):
    return torch.softmax(x, dim=axis)
def _gelu(x):
    return torch.nn.functional.gelu(x, approximate="tanh")
def _silu(x):
    return torch.nn.functional.silu(x)
def _sigmoid(x):
    return torch.sigmoid(x)
def _layernorm(x, axis=-1, eps=1e-5):
    m = x.mean(dim=axis, keepdim=True)
    v = x.var(dim=axis, keepdim=True, unbiased=False)
    return (x - m) / torch.sqrt(v + eps)
def _scatter_add(tgt, idx, src, axis=0):
    return tgt.clone().index_add_(axis, idx, src)
def _segment_sum(src, seg, n):
    out = torch.zeros((n,) + src.shape[1:], dtype=src.dtype)
    return out.index_add_(0, seg, src)
def _pad(x, pw):
    flat = tuple(v for pair in reversed(pw) for v in pair)
    return torch.nn.functional.pad(x, flat)

kernel_name = 'gated_mix__softmax_full_mha__glu_gated_bilinear__prompt'

def setup_inputs():

    _w = (lambda a: (lambda t: t.to(torch.bfloat16) if t.is_floating_point() else t)(torch.as_tensor(a)))
    def _A_setup():
        B, S, D = 1, 2048, 1024
        return {
            "x": _w((lambda *s: torch.randn(*s, dtype=torch.bfloat16) * 0.05)(B, S, D)),
            "wqkv": _w((lambda *s: torch.randn(*s, dtype=torch.bfloat16) * 0.8)(D, 3 * D)),
            "wo": _w((lambda *s: torch.randn(*s, dtype=torch.bfloat16) * 0.05)(D, D)),
        }
    _A_in = _A_setup()

    def _B_setup():
        B, S, D, F = 1, 2048, 1024, 3584
        return {
            "x": _w((lambda *s: torch.randn(*s, dtype=torch.bfloat16) * 0.05)(B, S, D)),
            "w_gate": _w((lambda *s: torch.randn(*s, dtype=torch.bfloat16) * 3.2)(D, F) * (D ** -0.5)),
            "w_up": _w((lambda *s: torch.randn(*s, dtype=torch.bfloat16) * 3.2)(D, F) * (D ** -0.5)),
            "w_down": _w((lambda *s: torch.randn(*s, dtype=torch.bfloat16) * 3.2)(F, D) * (F ** -0.5)),
        }
    _B_in = _B_setup()

    return {
        "A_x": _A_in["x"],
        "A_wqkv": _A_in["wqkv"],
        "A_wo": _A_in["wo"],
        "B_x": _B_in["x"],
        "B_w_gate": _B_in["w_gate"],
        "B_w_up": _B_in["w_up"],
        "B_w_down": _B_in["w_down"],
        "gate_w": _w((lambda *s: torch.randn(*s, dtype=torch.bfloat16) * 0.05)(1024) * 16.0),
    }

def reference(A_x, A_wqkv, A_wo, B_x, B_w_gate, B_w_up, B_w_down, gate_w):
    def _A_ref(x, wqkv, wo):
        B, S, D = x.shape
        H = 32; Dh = D // H
        qkv = (lambda x, *d: x.permute(*d))((x @ wqkv).reshape(B, S, 3, H, Dh), 2, 0, 3, 1, 4)
        q, k, v = qkv[0], qkv[1], qkv[2]
        scale = Dh ** -0.5
        scores = torch.einsum("bhqd,bhkd->bhqk", q, k) * scale
        p = _softmax(scores, axis=-1)
        o = torch.einsum("bhqk,bhkd->bhqd", p, v)
        return (lambda x, *d: x.permute(*d))(o, 0, 2, 1, 3).reshape(B, S, D) @ wo

    def _B_ref(x, w_gate, w_up, w_down):
        g = torch.einsum("bsd,df->bsf", x, w_gate)
        u = torch.einsum("bsd,df->bsf", x, w_up)
        h = g * u
        return torch.einsum("bsf,fd->bsd", h, w_down)

    x = A_x
    g = _sigmoid((x * gate_w).sum(-1, keepdims=True))
    a = _A_ref(x, A_wqkv, A_wo)
    b = _B_ref(x, B_w_gate, B_w_up, B_w_down)
    return g * a + (1 - g) * b
```

```python
import re

class Prog:
    def __init__(self):
        self.lines = []
    def __call__(self, *txt):
        for t in txt:
            if isinstance(t, (list, tuple)):
                self(*t)
            else:
                for l in t.split("\n"):
                    l = l.strip()
                    if l:
                        self.lines.append(l)
        return self
    def text(self):
        out = []
        for l in self.lines:
            out.append(l if (l.endswith(":") or l.startswith(".")) else "    " + l)
        return "\n".join(out) + "\n"

def vr(a, n=1, k="v"):
    return "%s%d" % (k, a) if n == 1 else "%s[%d:%d]" % (k, a, a + n - 1)

class R:
    def __init__(self, k, a, n):
        self.k, self.a, self.n = k, a, n
    def __str__(self):
        return vr(self.a, self.n, self.k)
    def sub(self, off, n=1):
        assert off + n <= self.n
        return R(self.k, self.a + off, n)
    def __getitem__(self, i):
        return self.sub(i, 1)

REG = re.compile(r"\b([vas])(\d+)\b|\b([vas])\[(\d+):(\d+)\]|\b(vcc|exec|m0|scc)\b")
def regs_of(op):
    out = []
    for m in REG.finditer(op):
        if m.group(1):
            out.append((m.group(1), int(m.group(2))))
        elif m.group(3):
            out += [(m.group(3), i) for i in range(int(m.group(4)), int(m.group(5)) + 1)]
        else:
            out.append((m.group(6), 0))
    return out

TRANS = ("v_exp_", "v_log_", "v_rcp_", "v_rsq_", "v_sqrt_", "v_sin_", "v_cos_")
def split_ops(s):
    return [x.strip() for x in s.split(",")]

def decode(line):
    line = line.split(";")[0].strip()
    parts = line.split(None, 1)
    op = parts[0]
    ops = split_ops(parts[1]) if len(parts) > 1 else []
    d = dict(op=op, w=[], r=[], cls="other", text=line)
    if op.startswith("v_mfma") or op.startswith("v_smfmac"):
        d["cls"] = "mfma"
        d["w"] = regs_of(ops[0])
        d["ab"] = regs_of(ops[1]) + regs_of(ops[2])
        last = ops[3].split()[0]
        if op.startswith("v_smfmac"):
            d["ab"] += regs_of(last)
            d["c"] = d["w"]
        else:
            d["c"] = regs_of(last)
        d["r"] = d["ab"] + d["c"]
        d["passes"] = 8 if "32x32" in op else 4
    elif op.startswith("v_"):
        d["cls"] = "valu"
        if op.startswith("v_cmp"):
            d["w"] = regs_of(ops[0]); d["r"] = sum((regs_of(o) for o in ops[1:]), [])
        elif op.startswith("v_permlane") and "swap" in op:
            d["w"] = regs_of(ops[0]) + regs_of(ops[1]); d["r"] = list(d["w"]); d["perm"] = True
        elif op.startswith("v_nop"):
            pass
        else:
            d["w"] = regs_of(ops[0]); d["r"] = sum((regs_of(o) for o in ops[1:]), [])
            if op.startswith(("v_fmac", "v_dot2c")) or "dpp" in line or "row_" in line:
                d["r"] += d["w"]
            if op.startswith(("v_add_co", "v_addc_co", "v_sub_co")):
                d["w"] += regs_of(ops[1])
        d["trans"] = op.startswith(TRANS)
        d["dpp"] = ("row_" in line or "quad_perm" in line)
        d["lane"] = op.startswith(("v_readfirstlane", "v_readlane"))
    elif op.startswith("ds_"):
        d["cls"] = "ds"
        if op.startswith(("ds_read", "ds_bpermute", "ds_swizzle")):
            d["w"] = regs_of(ops[0]); d["r"] = sum((regs_of(o) for o in ops[1:]), [])
        else:
            d["r"] = sum((regs_of(o) for o in ops), [])
    elif op.startswith(("buffer_", "global_")):
        d["cls"] = "vmem"
        lds = bool(re.search(r"\blds\b", line)) or "_lds_" in op
        if "load" in op and not lds:
            d["w"] = regs_of(ops[0]); d["r"] = sum((regs_of(o) for o in ops[1:]), [])
        else:
            d["r"] = sum((regs_of(o) for o in ops), [])
        if lds:
            d["r"].append(("m0", 0)); d["lds"] = True
        if "store" in op and ("x4" in op or "x3" in op):
            d["data"] = regs_of(ops[0]) if op.startswith("buffer") else regs_of(ops[1])
    elif op.startswith("s_load") or op.startswith("s_memtime") or op.startswith("s_memrealtime"):
        d["cls"] = "smem"
        d["w"] = regs_of(ops[0]); d["r"] = sum((regs_of(o) for o in ops[1:]), [])
    elif op == "s_waitcnt":
        d["cls"] = "wait"
        m = re.search(r"vmcnt\((\d+)\)", line); d["vm"] = int(m.group(1)) if m else None
        m = re.search(r"lgkmcnt\((\d+)\)", line); d["lg"] = int(m.group(1)) if m else None
    elif op == "s_nop":
        d["cls"] = "nop"; d["n"] = int(ops[0]) + 1
    elif op.startswith("s_"):
        d["cls"] = "salu"
        if op.startswith(("s_cmp", "s_cbranch", "s_branch", "s_barrier", "s_setprio", "s_endpgm", "s_sleep", "s_bitcmp")):
            d["r"] = sum((regs_of(o) for o in ops), []) if op.startswith(("s_cmp", "s_bitcmp")) else []
        else:
            d["w"] = regs_of(ops[0]); d["r"] = sum((regs_of(o) for o in ops[1:]), [])
    return d

def check(lines, name=""):
    errs = []
    t = 0
    lgq, vmq = [], []
    last_valu_w, last_trans_w, last_mfma_w, last_c_r, last_salu_w, last_store = {}, {}, {}, {}, {}, {}
    def err(msg, d):
        errs.append("%s: %s  <<%s>> (slot %d)" % (name, msg, d["text"], t))
    for line in lines:
        if line.endswith(":") or line.startswith(".") or line.startswith(";"):
            continue
        d = decode(line)
        c = d["cls"]
        if c == "wait":
            if d["lg"] is not None:
                if any(k == "smem" for k, _ in lgq) and d["lg"] != 0:
                    err("counted lgkmcnt with scalar loads in flight", d)
                while len(lgq) > d["lg"]:
                    lgq.pop(0)
            if d["vm"] is not None:
                while len(vmq) > d["vm"]:
                    vmq.pop(0)
            t += 1
            continue
        if c == "nop":
            t += d["n"]
            continue
        touched = set(d["r"]) | set(d["w"])
        for k, regs in lgq:
            if touched & regs:
                err("register still being loaded (lgkm) %s" % sorted(touched & regs)[:2], d)
        for regs in vmq:
            if touched & regs:
                err("register still being loaded (vm) %s" % sorted(touched & regs)[:2], d)
        def need(table, regs, n, what):
            for r in regs:
                if r in table and t - table[r] - 1 < n:
                    err("%s needs %d wait states, has %d (%s%d)" % (what, n, t - table[r] - 1, r[0], r[1]), d)
                    break
        if c == "mfma":
            need(last_valu_w, d["r"], 2, "valu->mfma")
            for r in d["ab"]:
                if r in last_mfma_w:
                    tt, p, _, _ = last_mfma_w[r]
                    n = {4: 8, 8: 12}[p]
                    if t - tt - 1 < n:
                        err("mfma D -> A/B needs %d has %d" % (n, t - tt - 1), d); break
            for r in set(d["c"]) | set(d["w"]):
                if r in last_mfma_w:
                    tt, p, w, op = last_mfma_w[r]
                    same = (w == d["c"] and w == d["w"] and p == d["passes"])
                    n = 0 if same else {4: 6, 8: 10}[p]
                    if t - tt - 1 < n:
                        err("mfma D -> C/D overlap needs %d has %d" % (n, t - tt - 1), d); break
        if c in ("valu", "ds", "vmem"):
            for r in touched:
                if r in last_mfma_w:
                    tt, p, _, _ = last_mfma_w[r]
                    n = {4: 8, 8: 12}[p]
                    if t - tt - 1 < n:
                        err("mfma D -> use needs %d has %d" % (n, t - tt - 1), d); break
        if c == "valu":
            for r in d["w"]:
                if r in last_c_r:
                    tt, p = last_c_r[r]
                    n = {4: 3, 8: 7}[p]
                    if t - tt - 1 < n:
                        err("mfma C read -> valu write needs %d has %d" % (n, t - tt - 1), d); break
            if not d.get("trans"):
                need(last_trans_w, d["r"], 1, "trans->valu")
            if d.get("perm") or d.get("dpp"):
                need(last_valu_w, [r for r in d["r"] if r[0] == "v"], 2, "valu->permlane/dpp")
            if d.get("lane"):
                need(last_valu_w, [r for r in d["r"] if r[0] == "v"], 1, "valu->readlane")
            need(last_valu_w, [r for r in d["r"] if r[0] in ("s", "vcc")], 2, "valu sgpr->valu")
            need(last_store, d["w"], 2, "store data WAR")
        if c in ("ds", "vmem"):
            need(last_store, d["w"], 1, "store data WAR")
        if c == "vmem":
            need(last_valu_w, [r for r in d["r"] if r[0] == "s"], 5, "valu sgpr->vmem")
            if d.get("lds"):
                need(last_salu_w, [("m0", 0)], 1, "m0->lds dma")
        if c == "valu":
            for r in d["w"]:
                last_valu_w[r] = t
                last_trans_w.pop(r, None)
                last_mfma_w.pop(r, None)
                if d.get("trans"):
                    last_trans_w[r] = t
        elif c == "mfma":
            for r in d["w"]:
                last_mfma_w[r] = (t, d["passes"], d["w"], d["op"])
                last_valu_w.pop(r, None)
            for r in d["c"]:
                last_c_r[r] = (t, d["passes"])
        elif c == "salu":
            for r in d["w"]:
                last_salu_w[r] = t
                last_valu_w.pop(r, None)
        elif c == "ds":
            lgq.append(("ds", set(d["w"])))
            if len(lgq) > 15:
                pass
        elif c == "smem":
            lgq.append(("smem", set(d["w"])))
        elif c == "vmem":
            vmq.append(set(d["w"]))
            if len(vmq) > 63:
                err("more than 63 vector memory ops outstanding", d)
            for r in d.get("data", []):
                last_store[r] = t
        t += 1
    return errs

def weave(main, fill):
    out = []
    for i, m in enumerate(main):
        out.append(m)
        out += fill.get(i, [])
    return out
```

```python
from asmlib import *
import struct

QKV_OFF = 0
ACT_OFF = 0xC00000
GATE_OFF = 0x1E00000
WS_USED = 0x1E02000
KB_TOTAL = 144
def f32(x):
    return "0x%08x" % struct.unpack("<I", struct.pack("<f", x))[0]
LOG2E = 1.4426950408889634
QSCALE = (32 ** -0.5) * LOG2E

LDS_X, LDS_GU, LDS_S = 0, 65536, 131072
K1_LDS = 147456

SX, SG, SU, SS, SW, SGW = 4, 8, 12, 16, 20, 40
sWave, sMt, sNt, sWm, sWn, sCnt = 24, 25, 26, 27, 44, 45
sOX, sOG, sOS, sStepG, sLw = 46, 47, 48, 49, 50
sColG, sColS, sPitch, sT0, sT1, sT2, sScale, sTile = 51, 52, 53, 54, 55, 56, 57, 58

accG = lambda jq, i: R("v", 0 + (jq * 8 + i) * 4, 4)
accU = lambda jq, i: R("a", 0 + (jq * 8 + i) * 4, 4)
accS = lambda jq, i: R("a", 128 + (jq * 8 + i) * 4, 4)
xfr = lambda st, i, ks: R("v", 128 + (i * 2 + ks) * 4, 4) if st == 0 else R("a", 192 + (i * 2 + ks) * 4, 4)
wfr = lambda b, ks: R("v", 192 + (b * 2 + ks) * 4, 4)
vXa, vGU, vS = 208, 210, 214
vDX, vDG, vDS = 216, 224, 228
vLane, vT = 230, 232

COLS = [("G", 0), ("U", 0), ("G", 1), ("U", 1), ("G", 2), ("U", 2), ("G", 3), ("U", 3), ("S", 0), ("S", 1)]
def acc(j, i):
    k, jq = COLS[j]
    return {"G": accG, "U": accU, "S": accS}[k](jq, i)

def w_reads(j, st, b):
    k, jq = COLS[j]
    out = []
    for ks in range(2):
        for h in range(2):
            d = wfr(b, ks).sub(2 * h, 2)
            if k == "S":
                out.append("ds_read_b64_tr_b16 %s, v%d offset:%d" % (d, vS + jq, st * 8192 + (32 * ks + 4 * h) * 128))
            else:
                out.append("ds_read_b64_tr_b16 %s, v%d offset:%d" % (d, vGU + jq, st * 32768 + (16384 if k == "U" else 0) + (32 * ks + 4 * h) * 256))
    return out

def x_read(buf, regset, i, ks):
    return "ds_read_b128 %s, v%d offset:%d" % (xfr(regset, i, ks), vXa + ks, buf * 32768 + i * 2048)

def dma_w(buf):
    out = []
    for m in range(4):
        out.append((LDS_GU + buf * 32768 + m * 4096, "buffer_load_dwordx4 v%d, s[%d:%d], s%d offen lds" % (vDG + m, SG, SG + 3, sOG)))
        out.append((LDS_GU + buf * 32768 + 16384 + m * 4096, "buffer_load_dwordx4 v%d, s[%d:%d], s%d offen lds" % (vDG + m, SU, SU + 3, sOG)))
    for m in range(2):
        out.append((LDS_S + buf * 8192 + m * 4096, "buffer_load_dwordx4 v%d, s[%d:%d], s%d offen lds" % (vDS + m, SS, SS + 3, sOS)))
    return out

def dma_x(buf):
    return [(LDS_X + buf * 32768 + m * 4096, "buffer_load_dwordx4 v%d, s[%d:%d], s%d offen lds" % (vDX + m, SX, SX + 3, sOX)) for m in range(8)]

def m0set(addr):
    return "s_add_u32 m0, s%d, %d" % (sLw, addr)

ADV_W = ["s_add_u32 s%d, s%d, s%d" % (sOG, sOG, sStepG), "s_add_u32 s%d, s%d, %d" % (sOS, sOS, 64 * 6144)]
ADV_X = ["s_add_u32 s%d, s%d, 128" % (sOX, sOX)]
NPRE = 3

def iteration(st, vtype):
    main, fill = [], {}
    add = lambda q, ins: fill.setdefault(q, []).extend(ins if isinstance(ins, list) else [ins])
    for j in range(10):
        for i in range(8):
            for ks in range(2):
                a = acc(j, i)
                w, x = wfr(j & 1, ks), xfr(st, i, ks)
                if vtype and COLS[j][0] == "S":
                    w, x = x, w
                main.append("v_mfma_f32_16x16x32_bf16 %s, %s, %s, %s" % (a, w, x, a))
    for j in range(9):
        for n, rd in enumerate(w_reads(j + 1, st, (j + 1) & 1)):
            add(16 * j + n, rd)
        if j < 8:
            add(16 * j + 6, x_read(1 - st, 1 - st, j, 0))
            add(16 * j + 10, x_read(1 - st, 1 - st, j, 1))
        add(16 * j + 15, "s_waitcnt lgkmcnt(%d)" % (2 if j < 8 else 0))
    add(144, ["s_waitcnt vmcnt(0)", "s_barrier"])
    for n, rd in enumerate(w_reads(0, 1 - st, 0)):
        add(145 + n, rd)
    add(159, "s_waitcnt lgkmcnt(0)")
    cur = dma_w(1 - st)[NPRE:] + dma_x(st)
    nw = 10 - NPRE
    pos = [16 * j + o for j in range(9) for o in (4, 8, 12)]
    for n, (lds, ins) in enumerate(cur):
        add(pos[n], m0set(lds))
        add(pos[n] + 1, ins)
        if n == nw - 1:
            add(pos[n] + 2, ADV_W)
        if n == len(cur) - 1:
            add(pos[n] + 2, ADV_X)
    for n, (lds, ins) in enumerate(dma_w(st)[:NPRE]):
        add(149 + 3 * n, m0set(lds))
        add(150 + 3 * n, ins)
    return weave(main, fill)

def prologue():
    p = Prog()
    p("""
    s_cmp_ge_u32 s2, 256
    s_cbranch_scc1 k1_done
    s_load_dwordx4 s[28:31], s[0:1], 0
    s_load_dwordx4 s[32:35], s[0:1], 32
    s_load_dwordx2 s[36:37], s[0:1], 56
    s_load_dwordx2 s[38:39], s[0:1], 80
    """)
    p("v_lshrrev_b32 v1, 6, v0", "v_and_b32 v%d, 63, v0" % vLane)
    p("v_readfirstlane_b32 s%d, v1" % sWave)
    p("s_lshr_b32 s%d, s2, 5" % sMt)
    p("s_and_b32 s%d, s2, 31" % sNt)
    p("s_lshr_b32 s%d, s%d, 1" % (sWm, sWave), "s_and_b32 s%d, s%d, 1" % (sWn, sWave), "s_lshl_b32 s%d, s%d, 10" % (sLw, sWave))
    p("s_lshl_b32 s%d, s%d, 8" % (sColG, sNt))
    p("s_lshl_b32 s%d, s%d, 7" % (sT0, sNt))
    p("s_add_u32 s%d, s%d, 4096" % (sColS, sT0), "s_add_u32 s%d, s%d, %d" % (sT1, sT0, 2560 - 16 * 128))
    p("s_cmp_lt_u32 s%d, 16" % sNt, "s_cselect_b32 s%d, s%d, s%d" % (sColS, sColS, sT1))
    p("s_sub_u32 s%d, s%d, 28" % (sT0, sNt), "s_mul_i32 s%d, s%d, 640" % (sT0, sT0), "s_add_u32 s%d, s%d, 512" % (sT1, sT0))
    p("s_cmp_ge_u32 s%d, 28" % sNt)
    p("s_cselect_b32 s%d, s%d, s%d" % (sColG, sT0, sColG), "s_cselect_b32 s%d, s%d, s%d" % (sColS, sT1, sColS))
    p("s_movk_i32 s%d, 7168" % sT0, "s_movk_i32 s%d, 6144" % sT1, "s_cselect_b32 s%d, s%d, s%d" % (sPitch, sT1, sT0))
    p("s_lshl_b32 s%d, s%d, 6" % (sStepG, sPitch))
    p("s_waitcnt lgkmcnt(0)")
    p("s_mov_b32 s%d, s28" % SX, "s_mov_b32 s%d, s29" % (SX + 1), "s_mov_b32 s%d, 0x400000" % (SX + 2), "s_mov_b32 s%d, 0x20000" % (SX + 3))
    p("s_mov_b32 s%d, s36" % SGW, "s_mov_b32 s%d, s37" % (SGW + 1), "s_mov_b32 s%d, 2048" % (SGW + 2), "s_mov_b32 s%d, 0x20000" % (SGW + 3))
    GX, GWv = 128, 144
    p("v_lshlrev_b32 v%d, 5, v%d" % (vT, vLane))
    p("s_lshl_b32 s%d, s2, 2" % sT0, "s_add_u32 s%d, s%d, s%d" % (sT0, sT0, sWave), "s_lshl_b32 s%d, s%d, 12" % (sT0, sT0))
    for n in range(4):
        p("buffer_load_dwordx4 v[%d:%d], v%d, s[%d:%d], s%d offen offset:%d" % (GX + 4 * n, GX + 4 * n + 3, vT, SX, SX + 3, sT0, (n >> 1) * 2048 + (n & 1) * 16))
    for n in range(2):
        p("buffer_load_dwordx4 v[%d:%d], v%d, s[%d:%d], 0 offen offset:%d" % (GWv + 4 * n, GWv + 4 * n + 3, vT, SGW, SGW + 3, n * 16))
    p("s_add_u32 s%d, s30, 256" % sT0, "s_addc_u32 s%d, s31, 0" % sT1)
    p("s_cmp_ge_u32 s%d, 28" % sNt)
    p("s_cselect_b32 s%d, s30, s32" % SG, "s_cselect_b32 s%d, s31, s33" % (SG + 1))
    p("s_cselect_b32 s%d, s%d, s34" % (SU, sT0), "s_cselect_b32 s%d, s%d, s35" % (SU + 1, sT1))
    p("s_mov_b32 s%d, 0x700000" % sT0)
    p("s_cselect_b32 s%d, 0x600000, s%d" % (SG + 2, sT0), "s_cselect_b32 s%d, 0x5fff00, s%d" % (SU + 2, sT0))
    p("s_mov_b32 s%d, 0x20000" % (SG + 3), "s_mov_b32 s%d, 0x20000" % (SU + 3))
    p("s_mov_b32 s%d, s30" % SS, "s_mov_b32 s%d, s31" % (SS + 1), "s_mov_b32 s%d, 0x600000" % (SS + 2), "s_mov_b32 s%d, 0x20000" % (SS + 3))
    p("s_mov_b32 s%d, s38" % SW, "s_mov_b32 s%d, s39" % (SW + 1), "s_mov_b32 s%d, 0x%x" % (SW + 2, WS_USED), "s_mov_b32 s%d, 0x20000" % (SW + 3))
    t0, t1, t2, t3 = vT + 1, vT + 2, vT + 3, vT + 4
    p("v_lshrrev_b32 v%d, 3, v%d" % (t0, vLane), "s_lshl_b32 s%d, s%d, 3" % (sT0, sWave), "v_add_u32 v%d, s%d, v%d" % (t0, sT0, t0))
    p("v_lshrrev_b32 v%d, 1, v%d" % (t1, t0), "v_xor_b32 v%d, v%d, v%d" % (t1, t1, vLane), "v_and_b32 v%d, 7, v%d" % (t1, t1))
    p("v_lshlrev_b32 v%d, 4, v%d" % (t1, t1), "v_lshl_add_u32 v%d, v%d, 11, v%d" % (vDX, t0, t1))
    for m in range(1, 8):
        p("v_add_u32 v%d, %d, v%d" % (vDX + m, m * 65536, vDX))
    p("s_lshl_b32 s%d, s%d, 19" % (sOX, sMt))
    for lds, ins in dma_x(0):
        p(m0set(lds), "s_nop 0", ins)
    p(ADV_X)
    p("v_lshrrev_b32 v%d, 4, v%d" % (t1, vLane), "v_and_b32 v%d, 1, v%d" % (t1, t1), "s_lshl_b32 s%d, s%d, 1" % (sT0, sWn))
    p("v_or_b32 v%d, s%d, v%d" % (t1, sT0, t1), "v_lshlrev_b32 v%d, 1, v%d" % (t1, t1), "v_xor_b32 v%d, v%d, v%d" % (t1, t1, vLane))
    p("v_and_b32 v%d, 7, v%d" % (t1, t1), "v_lshlrev_b32 v%d, 4, v%d" % (t1, t1))
    p("v_mul_u32_u24 v%d, 6144, v%d" % (t2, t0), "v_add3_u32 v%d, v%d, v%d, s%d" % (vDS, t2, t1, sColS))
    p("v_add_u32 v%d, %d, v%d" % (vDS + 1, 32 * 6144, vDS))
    p("v_lshrrev_b32 v%d, 4, v%d" % (t1, vLane), "s_lshl_b32 s%d, s%d, 2" % (sT0, sWave), "v_add_u32 v%d, s%d, v%d" % (t0, sT0, t1))
    p("s_lshl_b32 s%d, s%d, 2" % (sT0, sWm), "v_or_b32 v%d, s%d, v%d" % (t1, sT0, t1), "v_lshlrev_b32 v%d, 1, v%d" % (t1, t1))
    p("v_xor_b32 v%d, v%d, v%d" % (t1, t1, vLane), "v_and_b32 v%d, 15, v%d" % (t1, t1), "v_lshlrev_b32 v%d, 4, v%d" % (t1, t1))
    p("v_mul_u32_u24 v%d, s%d, v%d" % (t2, sPitch, t0), "v_add3_u32 v%d, v%d, v%d, s%d" % (vDG, t2, t1, sColG))
    p("s_lshl_b32 s%d, s%d, 4" % (sT0, sPitch))
    for m in range(1, 4):
        p("v_add_u32 v%d, s%d, v%d" % (vDG + m, sT0, vDG + m - 1))
    p("s_mov_b32 s%d, 0" % sOG, "s_mov_b32 s%d, 0" % sOS)
    for lds, ins in dma_w(0):
        p(m0set(lds), "s_nop 0", ins)
    p(ADV_W)
    for lds, ins in dma_x(1):
        p(m0set(lds), "s_nop 0", ins)
    p(ADV_X)
    for lds, ins in dma_w(1)[:NPRE]:
        p(m0set(lds), "s_nop 0", ins)
    ndma = 8 + 10 + 8 + NPRE
    p("v_and_b32 v%d, 15, v%d" % (t0, vLane), "v_lshrrev_b32 v%d, 4, v%d" % (t1, vLane))
    p("v_lshrrev_b32 v%d, 1, v%d" % (t2, t0), "v_xor_b32 v%d, v%d, v%d" % (t2, t2, t1), "v_lshlrev_b32 v%d, 4, v%d" % (t2, t2))
    p("v_lshl_add_u32 v%d, v%d, 7, v%d" % (t2, t0, t2), "s_lshl_b32 s%d, s%d, 14" % (sT0, sWm))
    p("v_add_u32 v%d, s%d, v%d" % (vXa, sT0, t2), "v_xor_b32 v%d, 64, v%d" % (vXa + 1, vXa))
    p("v_lshrrev_b32 v%d, 2, v%d" % (t0, t0))
    p("v_lshl_add_u32 v%d, v%d, 3, v%d" % (t2, t1, t0))
    p("v_and_b32 v%d, 1, v%d" % (t1, t1))
    p("v_and_b32 v%d, 3, v%d" % (t3, vLane), "v_lshlrev_b32 v%d, 3, v%d" % (t3, t3))
    p("v_lshl_add_u32 v%d, v%d, 2, v%d" % (vGU, t1, t0), "s_lshl_b32 s%d, s%d, 2" % (sT0, sWn), "v_xor_b32 v%d, s%d, v%d" % (vGU, sT0, vGU))
    p("v_lshlrev_b32 v%d, 5, v%d" % (vGU, vGU), "v_lshl_add_u32 v%d, v%d, 8, v%d" % (vGU, t2, vGU))
    p("s_mov_b32 s%d, %d" % (sT0, LDS_GU), "v_add3_u32 v%d, v%d, v%d, s%d" % (vGU, vGU, t3, sT0))
    for jq in range(1, 4):
        p("v_xor_b32 v%d, %d, v%d" % (vGU + jq, jq * 32, vGU))
    p("v_lshrrev_b32 v%d, 1, v%d" % (t0, t0), "v_lshl_add_u32 v%d, v%d, 1, v%d" % (vS, t1, t0))
    p("s_lshl_b32 s%d, s%d, 1" % (sT0, sWn), "v_xor_b32 v%d, s%d, v%d" % (vS, sT0, vS), "v_lshlrev_b32 v%d, 5, v%d" % (vS, vS))
    p("v_lshl_add_u32 v%d, v%d, 7, v%d" % (vS, t2, vS), "s_mov_b32 s%d, %d" % (sT0, LDS_S), "v_add3_u32 v%d, v%d, v%d, s%d" % (vS, vS, t3, sT0))
    p("v_xor_b32 v%d, 32, v%d" % (vS + 1, vS))
    for n in range(4):
        p("v_mov_b32 v%d, 0" % (192 + n))
    p("s_nop 1")
    for n in range(8):
        p("v_mfma_f32_32x32x16_bf16 v[%d:%d], v[192:195], v[192:195], 0" % (16 * n, 16 * n + 15))
    for n in range(12):
        p("v_mfma_f32_32x32x16_bf16 a[%d:%d], v[192:195], v[192:195], 0" % (16 * n, 16 * n + 15))
    p("s_waitcnt vmcnt(%d)" % ndma)
    g0, g1 = vT + 1, vT + 2
    p("v_mov_b32 v%d, 0" % g0, "v_mov_b32 v%d, 0" % g1)
    for n in range(8):
        p("v_dot2c_f32_bf16 v%d, v%d, v%d" % (g0, GX + n, GWv + n), "v_dot2c_f32_bf16 v%d, v%d, v%d" % (g1, GX + 8 + n, GWv + n))
    p("s_nop 2")
    for ctl in ("row_shr:1", "row_shr:2", "row_shr:4", "row_shr:8", "row_bcast:15 row_mask:0xa", "row_bcast:31 row_mask:0xc"):
        p("v_add_f32_dpp v%d, v%d, v%d %s" % (g0, g0, g0, ctl) + (" bound_ctrl:0" if "shr" in ctl else ""))
        p("v_add_f32_dpp v%d, v%d, v%d %s" % (g1, g1, g1, ctl) + (" bound_ctrl:0" if "shr" in ctl else ""))
        p("s_nop 0")
    for g in (g0, g1):
        p("v_mul_f32 v%d, %s, v%d" % (g, f32(-LOG2E), g))
    for g in (g0, g1):
        p("v_exp_f32 v%d, v%d" % (g, g))
    p("s_nop 0")
    for g in (g0, g1):
        p("v_add_f32 v%d, 1.0, v%d" % (g, g))
    for g in (g0, g1):
        p("v_rcp_f32 v%d, v%d" % (g, g))
    p("s_lshl_b32 s%d, s2, 2" % sT0, "s_add_u32 s%d, s%d, s%d" % (sT0, sT0, sWave), "s_lshl_b32 s%d, s%d, 3" % (sT0, sT0))
    p("s_add_u32 s%d, s%d, 0x%x" % (sT0, sT0, GATE_OFF))
    p("v_cmp_eq_u32 vcc, 63, v%d" % vLane, "v_mov_b32 v%d, 0x7ff00000" % (vT + 4), "s_nop 0", "v_cndmask_b32 v%d, v%d, 0, vcc" % (vT + 4, vT + 4))
    p("v_mov_b32 v%d, v%d" % (vT + 6, g0), "v_mov_b32 v%d, v%d" % (vT + 7, g1))
    p("buffer_store_dwordx2 v[%d:%d], v%d, s[%d:%d], s%d offen" % (vT + 6, vT + 7, vT + 4, SW, SW + 3, sT0))
    p("s_waitcnt vmcnt(%d)" % (NPRE + 1), "s_barrier")
    for i in range(8):
        for ks in range(2):
            p(x_read(0, 0, i, ks))
            if i == 6 and ks == 0:
                p("s_waitcnt lgkmcnt(8)")
    p(w_reads(0, 0, 0))
    p("s_mov_b32 s%d, 8" % sCnt)
    p("s_waitcnt lgkmcnt(0)", "s_barrier")
    return p.lines

def qk_block(p, a0, a1, cb_expr):
    p(cb_expr)
    p("s_cmp_lt_u32 s%d, 32" % sT2, "s_cselect_b32 s%d, %s, 1.0" % (sScale, f32(QSCALE)))
    p("s_lshl_b32 s%d, s%d, 17" % (sT2, sT2), "s_add_u32 s%d, s%d, s%d" % (sT2, sT2, sTile))
    for i in range(8):
        t = 128 + (i % 4) * 12
        src = [a0(i)[r] for r in range(4)] + [a1(i)[r] for r in range(4)]
        if src[0].k == "a":
            for r in range(8):
                p("v_accvgpr_read_b32 v%d, %s" % (t + r, src[r]))
            src = [R("v", t + r, 1) for r in range(8)]
        for r in range(8):
            p("v_mul_f32 v%d, s%d, %s" % (t + r, sScale, src[r]))
        for r in range(4):
            p("v_cvt_pk_bf16_f32 v%d, v%d, v%d" % (t + 8 + r, t + 2 * r, t + 2 * r + 1))
        if i == 4:
            p("s_add_u32 s%d, s%d, 4096" % (sT2, sT2))
        p("buffer_store_dwordx4 v[%d:%d], v%d, s[%d:%d], s%d offen offset:%d" % (t + 8, t + 11, vT, SW, SW + 3, sT2, ((i >> 1) & 1) * 2048 + (i & 1) * 64))

def qk_addr(p):
    t0, t1 = vT + 1, vT + 2
    p("v_lshrrev_b32 v%d, 4, v%d" % (t0, vLane), "v_lshlrev_b32 v%d, 9, v%d" % (vT, t0))
    p("v_bfe_u32 v%d, v%d, 2, 2" % (t1, vLane), "v_lshl_add_u32 v%d, v%d, 7, v%d" % (vT, t1, vT))
    p("v_and_b32 v%d, 3, v%d" % (t1, vLane), "v_lshl_add_u32 v%d, v%d, 4, v%d" % (vT, t1, vT))

def h_part(p):
    p("v_lshlrev_b32 v%d, 4, v%d" % (vT, vLane))
    p("s_lshl_b32 s%d, s%d, 1" % (sT0, sMt), "s_add_u32 s%d, s%d, s%d" % (sT0, sT0, sWm), "s_mul_i32 s%d, s%d, %d" % (sT0, sT0, 8 * KB_TOTAL))
    p("s_lshl_b32 s%d, s%d, 1" % (sT1, sNt), "s_add_u32 s%d, s%d, s%d" % (sT1, sT1, sWn), "s_lshl_b32 s%d, s%d, 1" % (sT1, sT1))
    p("s_add_u32 s%d, s%d, s%d" % (sT0, sT0, sT1), "s_lshl_b32 s%d, s%d, 10" % (sT0, sT0), "s_add_u32 s%d, s%d, 0x%x" % (sT0, sT0, ACT_OFF))
    n = 0
    for i in range(8):
        for pp in range(2):
            t = 128 + (n % 4) * 12
            n += 1
            for e in range(8):
                p("v_accvgpr_read_b32 v%d, %s" % (t + e, accU(2 * pp + e // 4, i)[e % 4]))
            for e in range(8):
                p("v_mul_f32 v%d, v%d, %s" % (t + e, t + e, accG(2 * pp + e // 4, i)[e % 4]))
            for r in range(4):
                p("v_cvt_pk_bf16_f32 v%d, v%d, v%d" % (t + 8 + r, t + 2 * r, t + 2 * r + 1))
            p("buffer_store_dwordx4 v[%d:%d], v%d, s[%d:%d], s%d offen offset:%d" % (t + 8, t + 11, vT, SW, SW + 3, sT0, pp * 1024))
        if i < 7:
            p("s_add_u32 s%d, s%d, %d" % (sT0, sT0, KB_TOTAL * 1024))

def tile_base(p):
    p("s_lshl_b32 s%d, s%d, 1" % (sTile, sMt), "s_add_u32 s%d, s%d, s%d" % (sTile, sTile, sWm), "s_lshl_b32 s%d, s%d, 13" % (sTile, sTile))

CB_S = ["s_lshr_b32 s%d, s%d, 6" % (sT2, sColS), "s_add_u32 s%d, s%d, s%d" % (sT2, sT2, sWn)]

def epi_v():
    p = Prog()
    p("s_nop 7")
    h_part(p)
    tile_base(p)
    p(CB_S)
    p("s_lshl_b32 s%d, s%d, 17" % (sT2, sT2), "s_add_u32 s%d, s%d, s%d" % (sT2, sT2, sTile))
    t0 = vT + 1
    p("v_lshrrev_b32 v%d, 4, v%d" % (t0, vLane), "v_lshlrev_b32 v%d, 9, v%d" % (vT, t0))
    p("v_and_b32 v%d, 15, v%d" % (t0, vLane), "v_lshl_add_u32 v%d, v%d, 4, v%d" % (vT, t0, vT))
    n = 0
    for pr in range(4):
        for jq in range(2):
            t = 128 + (n % 4) * 12
            n += 1
            for e in range(8):
                p("v_accvgpr_read_b32 v%d, %s" % (t + e, accS(jq, 2 * pr + e // 4)[e % 4]))
            for r in range(4):
                p("v_cvt_pk_bf16_f32 v%d, v%d, v%d" % (t + 8 + r, t + 2 * r, t + 2 * r + 1))
            p("buffer_store_dwordx4 v[%d:%d], v%d, s[%d:%d], s%d offen offset:%d" % (t + 8, t + 11, vT, SW, SW + 3, sT2, (pr & 1) * 2048 + jq * 256))
        if pr == 1:
            p("s_add_u32 s%d, s%d, 4096" % (sT2, sT2))
    return p.lines

def epi_a2():
    p = Prog()
    h_part(p)
    return p.lines

def epi_b():
    p = Prog()
    tile_base(p)
    qk_addr(p)
    for pp in range(2):
        cb = ["s_lshr_b32 s%d, s%d, 6" % (sT2, sColG), "s_lshl_b32 s%d, s%d, 1" % (sT1, sWn), "s_add_u32 s%d, s%d, s%d" % (sT2, sT2, sT1)]
        qk_block(p, lambda i: accG(2 * pp, i), lambda i: accG(2 * pp + 1, i), cb + ["s_add_u32 s%d, s%d, %d" % (sT2, sT2, pp)])
        qk_block(p, lambda i: accU(2 * pp, i), lambda i: accU(2 * pp + 1, i), cb + ["s_add_u32 s%d, s%d, %d" % (sT2, sT2, pp + 4)])
    return p.lines

def epi_s_qk():
    p = Prog()
    tile_base(p)
    qk_addr(p)
    qk_block(p, lambda i: accS(0, i), lambda i: accS(1, i), CB_S)
    return p.lines

LOOP_END = lambda lab: ["s_sub_u32 s%d, s%d, 1" % (sCnt, sCnt), "s_cmp_lg_u32 s%d, 0" % sCnt, "s_cbranch_scc1 %s" % lab]

def build():
    pro = prologue()
    bv = iteration(0, True) + iteration(1, True)
    bq = iteration(0, False) + iteration(1, False)
    p = Prog()
    p(pro)
    p("s_cmp_lt_u32 s%d, 16" % sNt, "s_cbranch_scc0 k1_loop_q")
    p(".p2align 6", "k1_loop_v:", bv, LOOP_END("k1_loop_v"))
    p(epi_v(), "s_branch k1_done")
    p(".p2align 6", "k1_loop_q:", bq, LOOP_END("k1_loop_q"))
    p("s_nop 7", "s_cmp_ge_u32 s%d, 28" % sNt, "s_cbranch_scc1 k1_epi_b")
    p(epi_a2(), "s_branch k1_epi_s")
    p("k1_epi_b:", epi_b())
    p("k1_epi_s:", epi_s_qk())
    p("k1_done:")
    errs = []
    errs += check(pro + (bv + LOOP_END("x")) * 3 + epi_v(), "k1 v")
    errs += check(pro + (bq + LOOP_END("x")) * 3 + ["s_nop 7"] + epi_a2() + epi_s_qk(), "k1 a2")
    errs += check(pro + (bq + LOOP_END("x")) * 3 + ["s_nop 7"] + epi_b() + epi_s_qk(), "k1 b")
    return p, errs

if __name__ == "__main__":
    p, errs = build()
    print("\n".join(errs) or "no hazards")
    print(len(p.lines), "lines")
```

```python
from asmlib import *
from k1 import QKV_OFF, ACT_OFF, GATE_OFF, WS_USED, KB_TOTAL, f32

K2_LDS = 131072
NSLOT, SLOT = 8, 16384
NSTAGE = 16
AHEAD = 6

SW = 4
sWave, sHead, sQb, sCnt, sOK, sOV, sLd, sRk, sRv, sT0, sT1, sT2, sQ, sLim = 8, 9, 10, 11, 12, 13, 14, 15, 16, 17, 18, 19, 20, 21

S = lambda n: R("v", 0 + 16 * (n % 4), 16)
O = lambda x: R("v", 64 + 16 * x, 16)
NM = lambda x: R("v", 96 + 16 * x, 16)
Q = lambda x, s: R("v", 128 + 8 * x + 4 * s, 4)
KF = lambda t, s: R("v", 144 + 8 * (t % 2) + 4 * s, 4)
VF = lambda t, m: R("v", 160 + 8 * (t % 4) + 4 * m, 4)
L = lambda x: R("v", 192 + 4 * x, 4)
ONES = R("v", 200, 4)
vIdx, vLane16, vK, vV, vG, vT, vLane = 204, 205, 206, 207, 208, 210, 220
K2_VGPRS = 224

def qk0(n, t, x, c=None):
    return "v_mfma_f32_32x32x16_bf16 %s, %s, %s, %s" % (S(n), KF(t, 0), Q(x, 0), NM(x) if c is None else c)
def qk1(n, t, x):
    return "v_mfma_f32_32x32x16_bf16 %s, %s, %s, %s" % (S(n), KF(t, 1), Q(x, 1), S(n))
def pv(n, t, x, m):
    return "v_smfmac_f32_32x32x32_bf16 %s, %s, %s, v%d" % (O(x), VF(t, m), S(n).sub(8 * m, 8), vIdx)
def rs(n, x, m):
    return "v_smfmac_f32_16x16x64_bf16 %s, %s, %s, v%d" % (L(x), ONES, S(n).sub(8 * m, 8), vIdx)
def k_read(t, s):
    return "ds_read_b128 %s, v%d offset:%d" % (KF(t, s), vK, (t % 4) * 2048 + s * 1024)
def v_read(t, m):
    return "ds_read_b128 %s, v%d offset:%d" % (VF(t, m), vV, 8192 + (t % 4) * 2048 + m * 1024)

def dma():
    out = []
    for n, so in enumerate((sOK, sOV)):
        out.append(["s_add_u32 m0, s%d, %d" % (sLd, n * 8192)] +
                   ["buffer_load_dwordx4 v%d, s[%d:%d], s%d offen offset:%d lds" % (vLane16, SW, SW + 3, so, o) for o in (0, 1024)])
    return out
ADV = ["s_add_u32 s%d, s%d, 8192" % (sOK, sOK), "s_add_u32 s%d, s%d, 8192" % (sOV, sOV),
       "s_add_u32 s%d, s%d, %d" % (sLd, sLd, SLOT), "s_and_b32 s%d, s%d, %d" % (sLd, sLd, NSLOT * SLOT - 1)]

def block(n, first=False, last=False, extra=None):
    extra = extra or {}
    e = ["v_exp_f32 %s, %s" % (S(n)[r], S(n)[r]) for r in range(16)]
    n1, n0 = n + 1, n - 1
    t1, x1, t0, x0 = n1 >> 1, n1 & 1, n0 >> 1, n0 & 1
    if n & 1:
        rd = [k_read((n + 3) >> 1, 0), k_read((n + 3) >> 1, 1)]
    else:
        rd = [v_read((n >> 1) + 1, 0), v_read((n >> 1) + 1, 1)]
    mats = [qk0(n1, t1, x1), pv(n0, t0, x0, 0), qk1(n1, t1, x1), rs(n0, x0, 0), pv(n0, t0, x0, 1), rs(n0, x0, 1)]
    if first:
        mats[1] = mats[3] = mats[4] = mats[5] = None
    if last:
        mats[0] = mats[2] = None
    post = [[], [], [], [rd[0]], [], ["s_waitcnt lgkmcnt(1)", rd[1]]]
    cuts = [0, 3, 6, 9, 11, 14, 16]
    out = []
    for k in range(6):
        if mats[k]:
            out.append(mats[k])
        out += extra.get(k, []) + post[k]
        out += e[cuts[k]:cuts[k + 1]]
    return out

def stage(first=False):
    d = dma()
    out = []
    for n in range(8):
        ex = {}
        if n == 0:
            ex = {0: ["s_waitcnt vmcnt(%d)" % (4 * (AHEAD - 2))], 1: ["s_barrier"], 4: d[0][:1]}
        if n == 1:
            ex = {1: d[0][1:2], 4: d[0][2:3], 2: []}
        if n == 2:
            ex = {0: d[1][:1], 1: d[1][1:2], 4: d[1][2:3]}
        if n == 3:
            ex = {0: ADV[:1], 1: ADV[1:3], 2: ADV[3:4]}
        if n == 4:
            ex = {0: ["s_add_u32 s%d, s%d, %d" % (sRk, sRk, SLOT)], 1: ["s_and_b32 s%d, s%d, %d" % (sRk, sRk, NSLOT * SLOT - 1)],
                  4: ["v_add_u32 v%d, s%d, v%d" % (vK, sRk, vLane16)]}
        if n == 5:
            ex = {4: ["v_mov_b32 v%d, v%d" % (vV, vK)]}
        out += block(n, first=(first and n == 0), extra=ex)
    return out

def prologue():
    p = Prog()
    p("""
    s_cmp_ge_u32 s2, 256
    s_cbranch_scc1 k2_done
    s_load_dwordx2 s[22:23], s[0:1], 80
    """)
    p("v_lshrrev_b32 v1, 6, v0", "v_and_b32 v%d, 63, v0" % vLane)
    p("v_readfirstlane_b32 s%d, v1" % sWave)
    p("v_lshlrev_b32 v%d, 4, v%d" % (vLane16, vLane))
    p("s_and_b32 s%d, s2, 7" % sT0, "s_lshl_b32 s%d, s%d, 2" % (sT0, sT0), "s_bfe_u32 s%d, s2, 0x20003" % sT1, "s_add_u32 s%d, s%d, s%d" % (sHead, sT0, sT1))
    p("s_lshr_b32 s%d, s2, 5" % sQb)
    p("s_lshl_b32 s%d, s%d, 17" % (sT0, sHead), "s_lshl_b32 s%d, s%d, 11" % (sLd, sWave))
    p("s_add_u32 s%d, s%d, s%d" % (sOK, sT0, sLd), "s_add_u32 s%d, s%d, 0x%x" % (sOK, sOK, QKV_OFF + 0x400000), "s_add_u32 s%d, s%d, 0x400000" % (sOV, sOK))
    p("s_lshl_b32 s%d, s%d, 2" % (sT1, sQb), "s_add_u32 s%d, s%d, s%d" % (sQ, sT1, sWave))
    p("s_lshl_b32 s%d, s%d, 12" % (sT1, sQ), "s_add_u32 s%d, s%d, s%d" % (sT0, sT0, sT1))
    p("s_waitcnt lgkmcnt(0)")
    p("s_mov_b32 s%d, s22" % SW, "s_mov_b32 s%d, s23" % (SW + 1), "s_mov_b32 s%d, 0x%x" % (SW + 2, WS_USED), "s_mov_b32 s%d, 0x20000" % (SW + 3))
    for x in range(2):
        for s in range(2):
            p("buffer_load_dwordx4 %s, v%d, s[%d:%d], s%d offen offset:%d" % (Q(x, s), vLane16, SW, SW + 3, sT0, x * 2048 + s * 1024))
    for st in range(AHEAD):
        for grp in dma():
            p(grp[0], "s_nop 0", grp[1:])
        p(ADV)
    t0, t1 = vT, vT + 1
    p("v_bfe_u32 v%d, v%d, 2, 1" % (t0, vLane), "v_bfe_u32 v%d, v%d, 3, 2" % (t1, vLane), "v_lshlrev_b32 v%d, 2, v%d" % (t1, t1))
    p("v_lshl_add_u32 v%d, v%d, 4, v%d" % (t0, t0, t1), "v_and_b32 v%d, 3, v%d" % (t1, vLane), "v_add_lshl_u32 v%d, v%d, v%d, 2" % (t0, t0, t1))
    p("s_lshl_b32 s%d, s%d, 8" % (sT1, sQ), "s_add_u32 s%d, s%d, 0x%x" % (sT1, sT1, GATE_OFF))
    for x in range(2):
        p("buffer_load_dword v%d, v%d, s[%d:%d], s%d offen offset:%d" % (vG + x, t0, SW, SW + 3, sT1, x * 128))
    p("v_mov_b32 v%d, 0xdddd" % vIdx)
    p("v_and_b32 v%d, 7, v%d" % (t1, vLane), "v_mov_b32 v%d, 0x3f803f80" % (vT + 2))
    p("v_cmp_eq_u32 vcc, 0, v%d" % t1, "v_cmp_eq_u32 s[24:25], 4, v%d" % t1, "s_nop 0")
    p("v_cndmask_b32 %s, 0, v%d, vcc" % (ONES[0], vT + 2), "v_cndmask_b32 %s, 0, v%d, vcc" % (ONES[1], vT + 2))
    p("v_cndmask_b32 %s, 0, v%d, s[24:25]" % (ONES[2], vT + 2), "v_cndmask_b32 %s, 0, v%d, s[24:25]" % (ONES[3], vT + 2))
    for x in range(2):
        for r in range(16):
            p("v_mov_b32 %s, 0" % O(x)[r])
        for r in range(4):
            p("v_mov_b32 %s, 0" % L(x)[r])
    p("v_mov_b32 v%d, v%d" % (vK, vLane16), "v_mov_b32 v%d, v%d" % (vV, vLane16), "s_mov_b32 s%d, 0" % sRk)
    p("s_waitcnt vmcnt(%d)" % (4 * (AHEAD - 1) + 2), "s_barrier")
    p(k_read(0, 0), k_read(0, 1), k_read(1, 0), k_read(1, 1), v_read(0, 0), v_read(0, 1))
    p("s_waitcnt lgkmcnt(4)")
    for x in range(2):
        p(qk0(2 + x, 0, x, c="0"), qk1(2 + x, 0, x))
    p("s_nop 7", "s_nop 3")
    for x in range(2):
        s = S(2 + x)
        m = vT + 4 + 2 * x
        p("v_max3_f32 v%d, %s, %s, %s" % (m, s[0], s[1], s[2]))
        for r in range(3, 15, 2):
            p("v_max3_f32 v%d, v%d, %s, %s" % (m, m, s[r], s[r + 1]))
        p("v_max_f32 v%d, v%d, %s" % (m, m, s[15]), "v_mov_b32 v%d, v%d" % (m + 1, m), "s_nop 1")
        p("v_permlane32_swap_b32 v%d, v%d" % (m, m + 1), "v_max_f32 v%d, v%d, v%d" % (m, m, m + 1))
        for r in range(16):
            p("v_sub_f32 %s, 0, v%d" % (NM(x)[r], m))
    p("s_nop 1")
    p(qk0(0, 0, 0), qk1(0, 0, 0))
    p("s_mov_b32 s%d, %d" % (sCnt, NSTAGE - 1), "s_waitcnt lgkmcnt(0)", "s_nop 7", "s_nop 1")
    return p.lines

def tail():
    n = 8
    return [pv(n - 1, (n - 1) >> 1, 1, 0), rs(n - 1, 1, 0), pv(n - 1, (n - 1) >> 1, 1, 1), rs(n - 1, 1, 1), "s_nop 7", "s_nop 3"]

def guard():
    p = Prog()
    p("s_mov_b32 s%d, %s" % (sLim, f32(2.0 ** 40)), "s_mov_b32 s%d, %s" % (sT0, f32(2.0 ** -40)))
    p("v_cmp_ngt_f32 s[24:25], s%d, %s" % (sLim, L(0)[0]), "v_cmp_ngt_f32 s[26:27], s%d, %s" % (sLim, L(1)[0]))
    p("v_cmp_nlt_f32 s[28:29], s%d, %s" % (sT0, L(0)[0]), "v_cmp_nlt_f32 s[30:31], s%d, %s" % (sT0, L(1)[0]))
    p("s_nop 3", "s_or_b64 s[24:25], s[24:25], s[26:27]", "s_or_b64 s[28:29], s[28:29], s[30:31]")
    p("s_or_b64 s[24:25], s[24:25], s[28:29]", "s_cbranch_scc1 k2_slow")
    return p.lines

def slow_body():
    p = Prog()
    for s in range(2):
        p("buffer_load_dwordx4 %s, v%d, s[%d:%d], s%d offen offset:%d" % (KF(0, s), vLane16, SW, SW + 3, sOK, s * 1024))
    for m in range(2):
        p("buffer_load_dwordx4 %s, v%d, s[%d:%d], s%d offen offset:%d" % (VF(0, m), vLane16, SW, SW + 3, sOV, m * 1024))
    p("s_add_u32 s%d, s%d, 2048" % (sOK, sOK), "s_add_u32 s%d, s%d, 2048" % (sOV, sOV), "s_waitcnt vmcnt(0)")
    for x in range(2):
        p(qk0(x, 0, x, c="0"), qk1(x, 0, x))
    p("s_nop 7", "s_nop 3")
    for x in range(2):
        s, mo, m, f = S(x), NM(x)[0], vT + 4, vT + 6
        p("v_max3_f32 v%d, %s, %s, %s" % (m, s[0], s[1], mo))
        for r in range(2, 16, 2):
            p("v_max3_f32 v%d, v%d, %s, %s" % (m, m, s[r], s[r + 1]))
        p("v_mov_b32 v%d, v%d" % (m + 1, m), "s_nop 1")
        p("v_permlane32_swap_b32 v%d, v%d" % (m, m + 1), "v_max_f32 v%d, v%d, v%d" % (m, m, m + 1))
        p("v_sub_f32 v%d, %s, v%d" % (f, mo, m), "v_exp_f32 v%d, v%d" % (f, f), "v_mov_b32 %s, v%d" % (mo, m))
        for r in range(16):
            p("v_sub_f32 %s, %s, v%d" % (s[r], s[r], m))
        for r in range(16):
            p("v_exp_f32 %s, %s" % (s[r], s[r]))
        for r in range(16):
            p("v_mul_f32 %s, %s, v%d" % (O(x)[r], O(x)[r], f))
        p("v_mul_f32 %s, %s, v%d" % (L(x)[0], L(x)[0], f), "s_nop 1")
        p(pv(x, 0, x, 0), rs(x, x, 0), pv(x, 0, x, 1), rs(x, x, 1))
    return p.lines

def slow_init():
    p = Prog()
    p("s_waitcnt vmcnt(0) lgkmcnt(0)")
    p("s_lshl_b32 s%d, s%d, 17" % (sOK, sHead), "s_add_u32 s%d, s%d, 0x%x" % (sOK, sOK, QKV_OFF + 0x400000), "s_add_u32 s%d, s%d, 0x400000" % (sOV, sOK))
    for x in range(2):
        for r in range(16):
            p("v_mov_b32 %s, 0" % O(x)[r])
        for r in range(4):
            p("v_mov_b32 %s, 0" % L(x)[r])
        p("v_sub_f32 %s, 0, %s" % (NM(x)[0], NM(x)[0]))
    p("s_mov_b32 s%d, 64" % sCnt)
    return p.lines

def epilogue():
    p = Prog()
    t0, t1, a = vT, vT + 1, vT + 2
    p("v_bfe_u32 v%d, v%d, 2, 1" % (t0, vLane), "v_mul_u32_u24 v%d, %d, v%d" % (a, KB_TOTAL * 1024, t0))
    p("v_bfe_u32 v%d, v%d, 3, 2" % (t0, vLane), "v_lshl_add_u32 v%d, v%d, 6, v%d" % (a, t0, a))
    p("v_and_b32 v%d, 3, v%d" % (t0, vLane), "v_lshl_add_u32 v%d, v%d, 4, v%d" % (a, t0, a))
    p("v_lshrrev_b32 v%d, 5, v%d" % (t0, vLane), "v_lshl_add_u32 v%d, v%d, 8, v%d" % (a, t0, a))
    p("s_mul_i32 s%d, s%d, %d" % (sT0, sQ, 4 * KB_TOTAL), "s_add_u32 s%d, s%d, s%d" % (sT0, sT0, sHead))
    p("s_lshl_b32 s%d, s%d, 10" % (sT0, sT0), "s_add_u32 s%d, s%d, 0x%x" % (sT0, sT0, ACT_OFF + 112 * 1024))
    p("s_waitcnt vmcnt(0)")
    for x in range(2):
        f = vT + 4
        p("v_rcp_f32 v%d, %s" % (f, L(x)[0]), "s_nop 0", "v_mul_f32 v%d, v%d, v%d" % (f, f, vG + x))
        for r in range(16):
            p("v_mul_f32 %s, %s, v%d" % (O(x)[r], O(x)[r], f))
        for c in range(2):
            d = S(x).sub(4 * c, 4)
            src = [4 * c, 4 * c + 2, 8 + 4 * c, 8 + 4 * c + 2]
            for k in range(4):
                p("v_cvt_pk_bf16_f32 %s, %s, %s" % (d[k], O(x)[src[k]], O(x)[src[k] + 1]))
            p("buffer_store_dwordx4 %s, v%d, s[%d:%d], s%d offen offset:%d" % (d, a, SW, SW + 3, sT0, c * 512))
        if x == 0:
            p("s_add_u32 s%d, s%d, %d" % (sT0, sT0, 2 * KB_TOTAL * 1024))
    return p.lines

LOOP_END = lambda lab: ["s_sub_u32 s%d, s%d, 1" % (sCnt, sCnt), "s_cmp_lg_u32 s%d, 0" % sCnt, "s_cbranch_scc1 %s" % lab]

def build():
    pro, st0, st = prologue(), stage(True), stage()
    p = Prog()
    p(pro, st0)
    p(".p2align 6", "k2_loop:", st, LOOP_END("k2_loop"))
    p(tail(), guard())
    p("k2_epi:", epilogue(), "s_branch k2_done")
    p("k2_slow:", slow_init(), "k2_slow_loop:", slow_body(), LOOP_END("k2_slow_loop"), "s_nop 7", "s_nop 3", "s_branch k2_epi")
    p("k2_done:")
    base = pro + st0 + (st + LOOP_END("x")) * 3 + tail() + guard()
    errs = check(base + epilogue(), "k2")
    errs += check(base + slow_init() + (slow_body() + LOOP_END("x")) * 2 + ["s_nop 7", "s_nop 3"] + epilogue(), "k2 slow")
    return p, errs

if __name__ == "__main__":
    p, errs = build()
    print("\n".join(errs) or "no hazards")
    print(len(p.lines), "lines")
```

```python
from asmlib import *
from k1 import ACT_OFF, GATE_OFF, WS_USED, KB_TOTAL, f32

NS = 6
SLOT = 16384
K3_LDS = NS * SLOT
AHEAD = NS - 1
NSTAGE = 36
SWITCH = 28

SW, SB, SO = 4, 8, 12
sWave, sMt, sNt, sCnt, sOA, sOA2, sOB, sLw, sT0, sT1, sIss = 16, 17, 18, 19, 20, 21, 22, 23, 24, 25, 26

acc = lambda x, jn: R("v", 0 + (x * 4 + jn) * 4, 4)
wfr = lambda b, jn: R("v", 32 + (b * 4 + jn) * 4, 4)
afr = lambda slot, x, kb: R("v", 64 + slot * 32 + (kb * 2 + x) * 4, 4) if slot < 5 else R("a", (slot - 5) * 32 + (kb * 2 + x) * 4, 4)
vR, vDB, vLane16, vG, vT, vLane = 224, 232, 236, 237, 240, 248
K3_ACCUM, K3_VGPRS = 252, 252 + 32

def w_reads(slot, kb, b):
    out = []
    for jn in range(4):
        for hh in range(2):
            base = vR + jn + (4 if slot >= 3 else 0)
            out.append("ds_read_b64_tr_b16 %s, v%d offset:%d" % (wfr(b, jn).sub(2 * hh, 2), base, (slot % 3) * SLOT + kb * 4096 + hh * 2048))
    return out

def loads(slot):
    g = []
    for kb in range(4):
        g.append(["s_add_u32 m0, s%d, %d" % (sLw, slot * SLOT + kb * 4096)])
        g.append(["buffer_load_dwordx4 v%d, s[%d:%d], s%d offen lds" % (vDB + kb, SB, SB + 3, sOB)])
        g.append(["buffer_load_dwordx4 %s, v%d, s[%d:%d], s%d offen offset:%d" % (afr(slot, 0, kb), vLane16, SW, SW + 3, sOA, kb * 1024)])
        g.append(["buffer_load_dwordx4 %s, v%d, s[%d:%d], s%d offen offset:%d" % (afr(slot, 1, kb), vLane16, SW, SW + 3, sOA2, kb * 1024)])
    return g

def adv():
    return [["s_add_u32 s%d, s%d, 4096" % (sOA, sOA), "s_add_u32 s%d, s%d, 4096" % (sOA2, sOA2)],
            ["s_add_u32 s%d, s%d, %d" % (sOB, sOB, 128 * 2048), "s_add_u32 s%d, s%d, 1" % (sIss, sIss)],
            ["s_cmp_eq_u32 s%d, %d" % (sIss, SWITCH), "s_cselect_b32 s%d, s30, s%d" % (SB, SB)],
            ["s_cselect_b32 s%d, s31, s%d" % (SB + 1, SB + 1), "s_cselect_b32 s%d, 0x200000, s%d" % (SB + 2, SB + 2)],
            ["s_cselect_b32 s%d, 0, s%d" % (sOB, sOB), "s_cmp_ge_u32 s%d, %d" % (sIss, NSTAGE)],
            ["s_cselect_b32 s%d, 0x7f000000, s%d" % (sOA, sOA), "s_cselect_b32 s%d, 0x7f000000, s%d" % (sOA2, sOA2)]]

def scale_block():
    p = Prog()
    p("s_nop 7")
    for x in range(2):
        for jn in range(4):
            for r in range(4):
                p("v_mul_f32 %s, %s, v%d" % (acc(x, jn)[r], acc(x, jn)[r], vG + x))
    p("s_nop 1")
    return p.lines

def stage(slot):
    main, fill = [], {}
    add = lambda q, ins: fill.setdefault(q, []).extend(ins if isinstance(ins, list) else [ins])
    for kb in range(4):
        for jn in range(4):
            for x in range(2):
                a = acc(x, jn)
                main.append("v_mfma_f32_16x16x32_bf16 %s, %s, %s, %s" % (a, wfr(kb & 1, jn), afr(slot, x, kb), a))
    for kb in range(3):
        for n, rd in enumerate(w_reads(slot, kb + 1, (kb + 1) & 1)):
            add(8 * kb + n // 2, rd)
        add(8 * kb + 7, "s_waitcnt lgkmcnt(0)")
    nxt = (slot + 1) % NS
    add(24, ["s_waitcnt vmcnt(%d)" % (12 * (AHEAD - 1)), "s_barrier"])
    for n, rd in enumerate(w_reads(nxt, 0, 0)):
        add(25 + n // 2, rd)
    add(31, "s_waitcnt lgkmcnt(0)")
    prev = (slot + NS - 1) % NS
    g = loads(prev) + adv()
    pos = [0, 1, 2, 4, 5, 6, 7, 8, 10, 11, 12, 13, 14, 15, 17, 18, 19, 20, 21, 22, 22, 23]
    for n, ins in enumerate(g):
        add(pos[n], ins)
    return weave(main, fill)

def prologue():
    p = Prog()
    p("""
    s_cmp_ge_u32 s2, 256
    s_cbranch_scc1 k3_done
    s_load_dwordx2 s[30:31], s[0:1], 16
    s_load_dwordx2 s[32:33], s[0:1], 48
    s_load_dwordx2 s[34:35], s[0:1], 64
    s_load_dwordx2 s[36:37], s[0:1], 80
    """)
    p("v_lshrrev_b32 v1, 6, v0", "v_and_b32 v%d, 63, v0" % vLane)
    p("v_readfirstlane_b32 s%d, v1" % sWave)
    p("v_lshlrev_b32 v%d, 4, v%d" % (vLane16, vLane))
    p("s_bfe_u32 s%d, s2, 0x20001" % sT0, "s_lshl_b32 s%d, s%d, 2" % (sT0, sT0), "s_lshr_b32 s%d, s2, 6" % sT1, "s_add_u32 s%d, s%d, s%d" % (sMt, sT0, sT1))
    p("s_and_b32 s%d, s2, 1" % sT0, "s_lshl_b32 s%d, s%d, 3" % (sT0, sT0), "s_bfe_u32 s%d, s2, 0x30003" % sT1, "s_add_u32 s%d, s%d, s%d" % (sNt, sT0, sT1))
    p("s_lshl_b32 s%d, s%d, 10" % (sLw, sWave))
    p("s_lshl_b32 s%d, s%d, 2" % (sT0, sMt), "s_add_u32 s%d, s%d, s%d" % (sT0, sT0, sWave))
    p("s_mul_i32 s%d, s%d, %d" % (sOA, sT0, 2 * KB_TOTAL * 1024), "s_add_u32 s%d, s%d, 0x%x" % (sOA, sOA, ACT_OFF), "s_add_u32 s%d, s%d, %d" % (sOA2, sOA, KB_TOTAL * 1024))
    p("s_mov_b32 s%d, 0" % sOB, "s_mov_b32 s%d, 0" % sIss)
    t0, t1, t2 = vT, vT + 1, vT + 2
    p("v_lshrrev_b32 v%d, 3, v%d" % (t0, vLane), "v_and_b32 v%d, 6, v%d" % (t1, t0), "v_xor_b32 v%d, v%d, v%d" % (t1, t1, vLane))
    p("v_and_b32 v%d, 7, v%d" % (t1, t1), "v_lshlrev_b32 v%d, 4, v%d" % (t1, t1), "v_lshl_add_u32 v%d, v%d, 11, v%d" % (t1, t0, t1))
    p("s_lshl_b32 s%d, s%d, 14" % (sT1, sWave), "s_lshl_b32 s%d, s%d, 7" % (sCnt, sNt), "s_add_u32 s%d, s%d, s%d" % (sT1, sT1, sCnt))
    p("v_add_u32 v%d, s%d, v%d" % (vDB, sT1, t1))
    for kb in range(1, 4):
        p("v_add_u32 v%d, %d, v%d" % (vDB + kb, kb * 65536, vDB))
    p("s_waitcnt lgkmcnt(0)")
    p("s_mov_b32 s%d, s36" % SW, "s_mov_b32 s%d, s37" % (SW + 1), "s_mov_b32 s%d, 0x%x" % (SW + 2, WS_USED), "s_mov_b32 s%d, 0x20000" % (SW + 3))
    p("s_mov_b32 s%d, s32" % SB, "s_mov_b32 s%d, s33" % (SB + 1), "s_mov_b32 s%d, 0x700000" % (SB + 2), "s_mov_b32 s%d, 0x20000" % (SB + 3))
    p("s_mov_b32 s%d, s34" % SO, "s_mov_b32 s%d, s35" % (SO + 1), "s_mov_b32 s%d, 0x400000" % (SO + 2), "s_mov_b32 s%d, 0x20000" % (SO + 3))
    p("v_and_b32 v%d, 15, v%d" % (t0, vLane), "v_lshlrev_b32 v%d, 2, v%d" % (t0, t0))
    p("s_lshl_b32 s%d, s%d, 7" % (sT0, sT0), "s_add_u32 s%d, s%d, 0x%x" % (sT0, sT0, GATE_OFF))
    for x in range(2):
        p("buffer_load_dword v%d, v%d, s[%d:%d], s%d offen offset:%d" % (vG + x, t0, SW, SW + 3, sT0, x * 64))
    for slot in range(AHEAD):
        for n, g in enumerate(loads(slot)):
            p(g)
            if n % 4 == 0:
                p("s_nop 0")
        p(adv())
    p("v_lshrrev_b32 v%d, 2, v%d" % (t0, vLane), "v_bfe_u32 v%d, v%d, 1, 2" % (t1, t0), "v_lshlrev_b32 v%d, 5, v%d" % (t1, t1))
    p("v_lshl_add_u32 v%d, v%d, 7, v%d" % (t1, t0, t1), "v_and_b32 v%d, 3, v%d" % (t2, vLane), "v_lshl_add_u32 v%d, v%d, 3, v%d" % (vR, t2, t1))
    for jn in range(1, 4):
        p("v_xor_b32 v%d, %d, v%d" % (vR + jn, jn * 32, vR))
    for jn in range(4):
        p("v_add_u32 v%d, %d, v%d" % (vR + 4 + jn, 3 * SLOT, vR + jn))
    for r in range(32):
        p("v_mov_b32 v%d, 0" % r)
    p("s_waitcnt vmcnt(%d)" % (12 * (AHEAD - 1)), "s_barrier")
    p(w_reads(0, 0, 0))
    for x in range(2):
        p("v_sub_f32 v%d, 1.0, v%d" % (vG + x, vG + x))
    p("s_mov_b32 s%d, 0" % sCnt, "s_waitcnt lgkmcnt(0)")
    return p.lines

def epilogue():
    p = Prog()
    t0, a = vT, vT + 1
    p("v_and_b32 v%d, 15, v%d" % (t0, vLane), "v_lshlrev_b32 v%d, 11, v%d" % (a, t0))
    p("v_bfe_u32 v%d, v%d, 4, 1" % (t0, vLane), "v_lshl_add_u32 v%d, v%d, 5, v%d" % (a, t0, a))
    p("v_lshrrev_b32 v%d, 5, v%d" % (t0, vLane), "v_lshl_add_u32 v%d, v%d, 4, v%d" % (a, t0, a))
    p("s_lshl_b32 s%d, s%d, 2" % (sT0, sMt), "s_add_u32 s%d, s%d, s%d" % (sT0, sT0, sWave), "s_lshl_b32 s%d, s%d, 16" % (sT0, sT0))
    p("s_lshl_b32 s%d, s%d, 7" % (sT1, sNt), "s_add_u32 s%d, s%d, s%d" % (sT0, sT0, sT1))
    for x in range(2):
        for u in range(2):
            d = 32 + (x * 2 + u) * 4
            A, B = acc(x, 2 * u), acc(x, 2 * u + 1)
            p("v_cvt_pk_bf16_f32 v%d, %s, %s" % (d, A[0], A[1]), "v_cvt_pk_bf16_f32 v%d, %s, %s" % (d + 1, A[2], A[3]))
            p("v_cvt_pk_bf16_f32 v%d, %s, %s" % (d + 2, B[0], B[1]), "v_cvt_pk_bf16_f32 v%d, %s, %s" % (d + 3, B[2], B[3]))
            p("s_nop 1", "v_permlane16_swap_b32 v%d, v%d" % (d, d + 2), "v_permlane16_swap_b32 v%d, v%d" % (d + 1, d + 3))
            p("buffer_store_dwordx4 v[%d:%d], v%d, s[%d:%d], s%d offen offset:%d" % (d, d + 3, a, SO, SO + 3, sT0, u * 64))
        if x == 0:
            p("s_add_u32 s%d, s%d, %d" % (sT0, sT0, 16 * 2048))
    return p.lines

LOOP_END = ["s_add_u32 s%d, s%d, 1" % (sCnt, sCnt), "s_cmp_lg_u32 s%d, %d" % (sCnt, NSTAGE // NS), "s_cbranch_scc1 k3_loop"]

def build():
    pro = prologue()
    sw_it, sw_pos = divmod(SWITCH, NS)
    p = Prog()
    p(pro, ".p2align 6", "k3_loop:")
    trace = []
    for slot in range(NS):
        if slot == sw_pos:
            p("s_cmp_lg_u32 s%d, %d" % (sCnt, sw_it), "s_cbranch_scc1 k3_noscale", scale_block(), "k3_noscale:")
            trace += scale_block()
        p(stage(slot))
        trace += stage(slot)
    p(LOOP_END, "s_nop 7", epilogue(), "k3_done:")
    errs = check(pro + (trace + LOOP_END) * 3 + ["s_nop 7"] + epilogue(), "k3")
    return p, errs

if __name__ == "__main__":
    p, errs = build()
    print("\n".join(errs) or "no hazards")
    print(len(p.lines), "lines")
```

```python
import sys, importlib
import k1, k2, k3
NAME = "gated_mix__softmax_full_mha__glu_gated_bilinear__prompt"
REF = open("cdna_kernels/%s.s.ref" % NAME).read().split("\n")
HEADER = [l for l in REF if l.startswith("; Kernarg") or l.startswith(";   offset")]

def kd(name, vgprs, accum, sgprs):
    return """.p2align 6
.amdhsa_kernel %s
  .amdhsa_next_free_vgpr %d
  .amdhsa_next_free_sgpr %d
  .amdhsa_accum_offset %d
  .amdhsa_group_segment_fixed_size 0
  .amdhsa_kernarg_size 88
  .amdhsa_user_sgpr_count 2
  .amdhsa_user_sgpr_kernarg_segment_ptr 1
  .amdhsa_system_sgpr_workgroup_id_x 1
  .amdhsa_float_denorm_mode_32 3
.end_amdhsa_kernel
""" % (name, vgprs, sgprs, accum)

def make(kernels, launches=None):
    out = "\n".join(HEADER) + "\n"
    for k in (launches or kernels):
        out += "; @launch kernel=%s grid=(%d,1,1) block=(%d,1,1) lds=%d\n" % (k[0], k[6], k[5], k[4])
    out += '.amdgcn_target "amdgcn-amd-amdhsa--gfx950"\n.text\n'
    for k in kernels:
        out += ".globl %s\n.p2align 8\n.type %s,@function\n%s:\n" % (k[0], k[0], k[0])
        out += k[1].text() + "    s_endpgm\n"
    out += '.section .rodata,"a"\n'
    for k in kernels:
        out += kd(k[0], k[2], k[3], 96)
    return out

def main(path):
    ks = []
    for mod, label, v, a, lds in ((k1, "proj_kernel", 512, 256, k1.K1_LDS), (k2, "attn_kernel", k2.K2_VGPRS, k2.K2_VGPRS, k2.K2_LDS),
                                  (k3, "mix_kernel", k3.K3_VGPRS, k3.K3_ACCUM, k3.K3_LDS)):
        p, errs = mod.build()
        if errs:
            print("\n".join(errs)); raise SystemExit(1)
        ks.append((label, p, v, a, lds, 256, 256))
    open(path, "w").write(make(ks))

if __name__ == "__main__":
    main(sys.argv[1] if len(sys.argv) > 1 else "cdna_kernels/%s.s" % NAME)
```
